```python
import torch

def _softmax(x, axis=-1):
    return torch.softmax(x, dim=axis)
def _gelu(x):
    return torch.nn.functional.gelu(x, approximate="tanh")
def _silu(x):
    return torch.nn.functional.silu(x)
def _sigmoid(x):
    return torch.sigmoid(x)
def _layernorm(x, axis=-1, eps=1e-5):
    m = x.mean(dim=axis, keepdim=True)
    v = x.var(dim=axis, keepdim=True, unbiased=False)
    return (x - m) / torch.sqrt(v + eps)
def _scatter_add(tgt, idx, src, axis=0):
    return tgt.clone().index_add_(axis, idx, src)
def _segment_sum(src, seg, n):
    out = torch.zeros((n,) + src.shape[1:], dtype=src.dtype)
    return out.index_add_(0, seg, src)
def _pad(x, pw):
    flat = tuple(v for pair in reversed(pw) for v in pair)
    return torch.nn.functional.pad(x, flat)

kernel_name = 'gated_mix__ssm_conv_h3__geglu_ffn__prompt'

def setup_inputs():

    _w = (lambda a: (lambda t: t.to(torch.bfloat16) if t.is_floating_point() else t)(torch.as_tensor(a)))
    def _A_setup():
        B, S, D = 1, 2048, 1024
        ks = 4
        return {
            "q": _w((lambda *s: torch.randn(*s, dtype=torch.bfloat16) * 0.05)(B, S, D)),
            "k": _w((lambda *s: torch.randn(*s, dtype=torch.bfloat16) * 0.4)(B, S, D)),
            "v": _w((lambda *s: torch.randn(*s, dtype=torch.bfloat16) * 0.4)(B, S, D)),
            "shift_k": _w((lambda *s: torch.randn(*s, dtype=torch.bfloat16) * 0.4)(D, ks) * 0.5),
            "ssm_k": _w((lambda *s: torch.randn(*s, dtype=torch.bfloat16) * 0.4)(D, S) * (1.0 / S ** 0.5)),
            "ssm_D": _w((lambda *s: torch.randn(*s, dtype=torch.bfloat16) * 0.4)(D)),
        }
    _A_in = _A_setup()

    def _B_setup():
        B, S, D, F = 1, 2048, 1024, 3584
        return {
            "x": _w((lambda *s: torch.randn(*s, dtype=torch.bfloat16) * 0.05)(B, S, D)),
            "w_gate": _w((lambda *s: torch.randn(*s, dtype=torch.bfloat16) * 0.05)(D, F)),
            "w_up": _w((lambda *s: torch.randn(*s, dtype=torch.bfloat16) * 0.05)(D, F)),
            "w_down": _w((lambda *s: torch.randn(*s, dtype=torch.bfloat16) * 0.05)(F, D)),
        }
    _B_in = _B_setup()

    return {
        "A_q": _A_in["q"],
        "A_k": _A_in["k"],
        "A_v": _A_in["v"],
        "A_shift_k": _A_in["shift_k"],
        "A_ssm_k": _A_in["ssm_k"],
        "A_ssm_D": _A_in["ssm_D"],
        "B_x": _B_in["x"],
        "B_w_gate": _B_in["w_gate"],
        "B_w_up": _B_in["w_up"],
        "B_w_down": _B_in["w_down"],
        "gate_w": _w((lambda *s: torch.randn(*s, dtype=torch.bfloat16) * 0.05)(1024) * 16.0),
    }

def reference(A_q, A_k, A_v, A_shift_k, A_ssm_k, A_ssm_D, B_x, B_w_gate, B_w_up, B_w_down, gate_w):
    def _A_ref(q, k, v, shift_k, ssm_k, ssm_D):
        B, S, D = q.shape
        ks = shift_k.shape[-1]
        k_pad = _pad(k, ((0, 0), (ks - 1, 0), (0, 0)))
        k_shift = torch.zeros_like(k)
        for t in range(ks):
            k_shift = k_shift + k_pad[:, t:t + S, :] * shift_k[:, ks - 1 - t][None, None, :]
        kv = k_shift * v
        L = 2 * S
        kv_pad = _pad(kv, ((0, 0), (0, S), (0, 0)))
        kf_pad = _pad(ssm_k, ((0, 0), (0, S)))
        kv_f = (lambda x, axes=(-2,-1): torch.fft.rfft2(x.float(), dim=axes))(kv_pad[:, None, :, :], axes=(1, 2))
        kf_f = (lambda x, axes=(-2,-1): torch.fft.rfft2(x.float(), dim=axes))(kf_pad[:, None, :], axes=(1, 2))
        kf_f = (lambda x, *d: x.permute(*d))(kf_f, 1, 2, 0)
        y_f = kv_f * kf_f[None, :, :, :]
        y = (lambda x, s, axes=(-2,-1): torch.fft.irfft2(x, s=s, dim=axes).to(torch.bfloat16))(y_f, (1, L), axes=(1, 2))[:, 0, :S, :]
        y = y + kv * ssm_D[None, None, :]
        return q * y

    def _B_ref(x, w_gate, w_up, w_down):
        return (_gelu(x @ w_gate) * (x @ w_up)) @ w_down

    x = A_q
    g = _sigmoid((x * gate_w).sum(-1, keepdims=True))
    a = _A_ref(x, A_k, A_v, A_shift_k, A_ssm_k, A_ssm_D)
    b = _B_ref(x, B_w_gate, B_w_up, B_w_down)
    return g * a + (1 - g) * b
```

```python
from gen import *

REG = 25856; UC = 4160; HO = 16640; HE = 21280

def conv_body(a, opt, pfx, wave_s, chan_s, lds_base_s, V0=0):
    ACC = 16; FR = 48
    uf = lambda st, m: FR + st * 64 + m * 4
    hf = lambda st, i: FR + st * 64 + 32 + i * 4
    acc = lambda T: ACC + T * 4
    VU, VH, VE = 3, 4, 5
    a(f"s_lshl_b32 s44, {chan_s}, 13")
    a(f"s_add_u32 s8, s38, s44"); a("s_addc_u32 s9, s39, 0")
    a(f"s_add_u32 s8, s8, {WS_V}"); a("s_addc_u32 s9, s9, 0")
    a("s_mov_b32 s10, 4096"); a("s_mov_b32 s11, 0x00020000")
    a("s_add_u32 s12, s8, 4096"); a("s_addc_u32 s13, s9, 0")
    a("s_mov_b32 s14, 4096"); a("s_mov_b32 s15, 0x00020000")
    a(f"s_lshl_b32 s44, {chan_s}, 12")
    a("s_add_u32 s16, s4, s44"); a("s_addc_u32 s17, s5, 0")
    a("s_mov_b32 s18, 4096"); a("s_mov_b32 s19, 0x00020000")
    a("s_add_u32 s20, s38, s44"); a("s_addc_u32 s21, s39, 0")
    a(f"s_add_u32 s20, s20, {WS_Z}"); a("s_addc_u32 s21, s21, 0")
    a("s_mov_b32 s22, 4096"); a("s_mov_b32 s23, 0x00020000")
    a(f"s_lshr_b32 s45, {chan_s}, 1"); a("s_lshl_b32 s45, s45, 2")
    a("s_load_dword s46, s[6:7], s45")
    a("v_lshlrev_b32 v6, 4, v2")
    a("v_add_u32 v7, 4, v6")
    a("v_add_u32 v8, 8, v6")
    a(f"s_add_u32 m0, {lds_base_s}, {HO+448}")
    a("s_nop 0")
    for i in range(4): a(f"buffer_load_dwordx4 v6, s[16:19], 0 offen offset:{i*1024} lds")
    a(f"s_add_u32 m0, {lds_base_s}, {HE+464}")
    a("s_nop 0")
    for i in range(4): a(f"buffer_load_dwordx4 v8, s[16:19], 0 offen offset:{i*1024} lds")
    for c in range(4):
        a(f"s_add_u32 m0, {lds_base_s}, {c*UC}")
        a("s_nop 0")
        srdn = "s[8:11]" if c % 2 == 0 else "s[12:15]"
        vo = "v7" if c < 2 else "v6"
        for i in range(4): a(f"buffer_load_dwordx4 {vo}, {srdn}, 0 offen offset:{i*1024} lds")
    a("v_mov_b32 v9, 0x80000000")
    a("v_cmp_eq_u32 vcc, 28, v2")
    a("v_mov_b32 v10, 0"); a("v_mov_b32 v11, 0")
    a("v_cndmask_b32 v9, v9, v10, vcc")
    a("buffer_load_dwordx2 v[14:15], v9, s[16:19], 0 offen")
    a("v_mov_b32 v12, 0"); a("v_mov_b32 v13, 0")
    a("v_lshrrev_b32 v9, 2, v2"); a(f"v_mul_u32_u24 v9, {UC}, v9")
    a("v_and_b32 v8, 3, v2"); a("v_lshlrev_b32 v8, 4, v8")
    a(f"v_add3_u32 v9, v9, v8, {lds_base_s}")
    a(f"v_add_u32 v8, {lds_base_s}, v6")
    a("v_cmp_gt_u32 vcc, 16, v2")
    a("s_and_saveexec_b64 s[24:25], vcc")
    a("ds_write_b128 v9, v[10:13] offset:4096")
    a("s_mov_b64 exec, s[24:25]")
    a("v_cmp_gt_u32 vcc, 28, v2")
    a("s_and_saveexec_b64 s[24:25], vcc")
    a(f"ds_write_b128 v8, v[10:13] offset:{HO}")
    a("s_mov_b64 exec, s[24:25]")
    a("v_and_b32 v9, 3, v2"); a(f"v_mul_u32_u24 v9, {UC}, v9")
    a("v_bfe_u32 v6, v2, 2, 2")
    a("v_lshrrev_b32 v7, 4, v2")
    a("v_sub_u32 v6, v7, v6")
    a("v_lshlrev_b32 v6, 4, v6")
    a(f"v_add3_u32 v{VU}, v9, v6, {lds_base_s}")
    a(f"v_add_u32 v{VU}, {4080-4032}, v{VU}")
    a("v_bfe_u32 v6, v2, 1, 3"); a("v_lshlrev_b32 v6, 6, v6")
    a("v_lshlrev_b32 v7, 4, v7")
    a("v_and_b32 v9, 1, v2")
    a(f"v_mul_u32_u24 v9, {HE-HO}, v9")
    a(f"v_sub_u32 v9, {HE}, v9")
    a("v_add3_u32 v6, v6, v7, v9")
    a(f"v_add_u32 v{VH}, {lds_base_s}, v6")
    a("v_lshrrev_b32 v6, 4, v2"); a("v_lshlrev_b32 v6, 3, v6")
    a("v_and_b32 v7, 1, v2"); a("v_lshlrev_b32 v7, 2, v7")
    a("v_bfe_u32 v9, v2, 1, 3"); a("v_lshlrev_b32 v9, 5, v9")
    a("v_add3_u32 v6, v6, v7, v9")
    a(f"v_lshlrev_b32 v{VE}, 1, v6")
    for i in range(32): a(f"v_mov_b32 v{ACC+i}, 0")
    a("s_waitcnt vmcnt(0)")
    a("v_cmp_gt_u32 vcc, 29, v2")
    a("s_and_saveexec_b64 s[24:25], vcc")
    a(f"ds_write_b128 v8, v[12:15] offset:{HE}")
    a("s_mov_b64 exec, s[24:25]")
    a("s_waitcnt lgkmcnt(0)")

    def reads(j0):
        st = j0 & 1
        r = []
        for q in range(8):
            e = 8 * q + 7 - j0
            r.append(f"ds_read_b128 {vr(uf(st,q),4)}, v{VU} offset:{64*(63-e)}")
            r.append(f"ds_read_b128 {vr(hf(st,q),4)}, v{VH} offset:{64*(j0+8*q)}")
        return r
    for i in reads(0): a(i)
    for j0 in range(8):
        st = j0 & 1
        fill = reads(j0 + 1) if j0 < 7 else []
        pairs = sorted([(i, m) for i in range(8) for m in range(8) if i + m <= 7], key=lambda p: (max(p), p))
        nissued = 0
        lastq = -1
        for n, (i, m) in enumerate(pairs):
            q = max(i, m)
            if q != lastq:
                a(f"s_waitcnt lgkmcnt({min(15, 2*(7-q) + nissued)})")
                lastq = q
            a(f"v_mfma_f32_16x16x32_bf16 {vr(acc(i+m),4)}, {vr(uf(st,m),4)}, {vr(hf(st,i),4)}, {vr(acc(i+m),4)}")
            if n >= 12 and fill:
                a(fill.pop(0)); nissued += 1
        assert not fill
    a("s_waitcnt lgkmcnt(0)")
    a(f"s_and_b32 s45, {chan_s}, 1")
    a("s_lshl_b32 s47, s46, 16")
    a("s_and_b32 s46, s46, 0xffff0000")
    a("s_cmp_eq_u32 s45, 1")
    a("s_cselect_b32 s46, s46, s47")
    a(f"v_sub_u32 v6, {3*UC + 2*2044}, v{VE}")
    a(f"v_add_u32 v6, {lds_base_s}, v6")
    UU = FR
    for T in range(8):
        a(f"v_subrev_u32 v7, {512*T}, v6")
        a(f"ds_read_b64 {vr(UU+2*T,2)}, v7")
    a("s_waitcnt lgkmcnt(0)")
    TT = FR + 16
    for T in range(8):
        t = TT + (T & 1) * 12
        u0 = UU + 2 * T
        a(f"v_and_b32 v{t+0}, 0xffff0000, v{u0+1}")
        a(f"v_lshlrev_b32 v{t+1}, 16, v{u0+1}")
        a(f"v_and_b32 v{t+2}, 0xffff0000, v{u0}")
        a(f"v_lshlrev_b32 v{t+3}, 16, v{u0}")
        for r in range(4): a(f"v_mul_f32 v{t+r}, s46, v{t+r}")
        a(f"v_cvt_pk_bf16_f32 v{t+4}, v{t}, v{t+1}")
        a(f"v_cvt_pk_bf16_f32 v{t+5}, v{t+2}, v{t+3}")
        a(f"v_cvt_pk_bf16_f32 v{t+6}, v{acc(T)}, v{acc(T)+1}")
        a(f"v_cvt_pk_bf16_f32 v{t+7}, v{acc(T)+2}, v{acc(T)+3}")
        for h in range(2):
            a(f"v_lshlrev_b32 v{t+2*h}, 16, v{t+4+h}")
            a(f"v_and_b32 v{t+2*h+1}, 0xffff0000, v{t+4+h}")
            a(f"v_lshlrev_b32 v{t+8}, 16, v{t+6+h}")
            a(f"v_and_b32 v{t+9}, 0xffff0000, v{t+6+h}")
            a(f"v_add_f32 v{t+2*h}, v{t+2*h}, v{t+8}")
            a(f"v_add_f32 v{t+2*h+1}, v{t+2*h+1}, v{t+9}")
        a(f"v_cvt_pk_bf16_f32 v{t+10}, v{t}, v{t+1}")
        a(f"v_cvt_pk_bf16_f32 v{t+11}, v{t+2}, v{t+3}")
        a(f"buffer_store_dwordx2 {vr(t+10,2)}, v{VE}, s[20:23], 0 offen offset:{512*T}")

def gen_conv(a, opt):
    name = "conv_kernel"
    kernel_head(a, name)
    a("s_cmp_ge_u32 s2, 256")
    a("s_cbranch_scc1 CV_end")
    a("s_load_dwordx4 s[4:7], s[0:1], 32")
    a("s_load_dwordx2 s[38:39], s[0:1], 104")
    a("v_lshrrev_b32 v1, 6, v0")
    a("v_and_b32 v2, 63, v0")
    a("s_nop 0")
    a("v_readfirstlane_b32 s40, v1")
    a("s_nop 3")
    a("s_lshl_b32 s41, s2, 2")
    a("s_add_u32 s41, s41, s40")
    a(f"s_mul_i32 s42, s40, {REG}")
    a("s_waitcnt lgkmcnt(0)")
    conv_body(a, opt, "CV", "s40", "s41", "s42")
    a.label("CV_end")
    a("s_endpgm")
    return kernel_desc(name, 176)
```

```python
from gen import *

def gen_gemm1(a, opt):
    name = "gemm1_kernel"
    ASL = 32768; NA = 3; BUN = 16384; NB = 4; BBASE = NA * ASL
    KSTEPS = 32
    ACC = 16
    XF = 144
    WF = 208
    VA0, VA1, VB = 240, 241, 242
    VX0, VX1, VW0, VW1 = 243, 244, 245, 246
    VXS, VWS0, VWS1 = 247, 248, 249
    acc = lambda mt, nt: ACC + (mt * 4 + nt) * 4
    xf = lambda st, mt: XF + st * 32 + mt * 4
    wf = lambda st, nt: WF + st * 16 + nt * 4

    kernel_head(a, name)
    a("s_cmp_ge_u32 s2, 256")
    a("s_cbranch_scc1 G1_end")
    a("s_load_dwordx4 s[4:7], s[0:1], 0")
    a("s_load_dwordx4 s[28:31], s[0:1], 16")
    a("s_load_dwordx4 s[32:35], s[0:1], 56")
    a("s_load_dwordx2 s[36:37], s[0:1], 80")
    a("s_load_dwordx2 s[38:39], s[0:1], 104")
    a("v_lshrrev_b32 v1, 6, v0")
    a("v_and_b32 v2, 63, v0")
    a("s_nop 0")
    a("v_readfirstlane_b32 s40, v1")
    a("s_cmp_ge_u32 s2, 224")
    a("s_cbranch_scc1 G1_prep")
    a("s_and_b32 s41, s2, 7")
    a("s_lshr_b32 s42, s2, 3")
    a("s_and_b32 s43, s41, 1")
    a("s_lshl_b32 s43, s43, 2")
    a("s_and_b32 s44, s42, 3")
    a("s_add_u32 s43, s43, s44")
    a("s_lshr_b32 s44, s41, 1")
    a("s_mul_i32 s44, s44, 7")
    a("s_lshr_b32 s45, s42, 2")
    a("s_add_u32 s44, s44, s45")
    a("s_lshr_b32 s41, s40, 2")
    a("s_and_b32 s42, s40, 3")
    a("s_waitcnt lgkmcnt(0)")
    st = Stamps(a, opt.get("stamps", False))
    st()
    srd(a, 8, 4, S * D * 2)
    srd(a, 12, 32, D * F * 2)
    srd(a, 16, 34, D * F * 2)
    srd(a, 20, 38, S * F * 2, WS_H)

    a("v_lshrrev_b32 v4, 3, v2")
    a("v_and_b32 v5, 7, v2")
    a("v_xor_b32 v5, v5, v4")
    a("v_lshlrev_b32 v5, 4, v5")
    a("s_lshl_b32 s45, s43, 8")
    a("s_lshl_b32 s46, s40, 4")
    a("s_add_u32 s46, s45, s46")
    a("v_add_u32 v4, s46, v4")
    a("v_lshlrev_b32 v4, 11, v4")
    a(f"v_add_u32 v{VA0}, v4, v5")
    a(f"v_add_u32 v{VA1}, {8*2048 - 1024}, v{VA0}")
    a("v_lshrrev_b32 v5, 4, v0")
    a("v_and_b32 v6, 7, v5")
    a("v_lshlrev_b32 v6, 1, v6")
    a("v_and_b32 v7, 15, v2")
    a("v_xor_b32 v6, v6, v7")
    a("v_lshlrev_b32 v6, 4, v6")
    a("v_and_b32 v7, 19, v5")
    a("v_lshrrev_b32 v8, 1, v5"); a("v_and_b32 v8, 4, v8")
    a("v_lshlrev_b32 v9, 1, v5"); a("v_and_b32 v9, 8, v9")
    a("v_or3_b32 v7, v7, v8, v9")
    a("v_mul_u32_u24 v7, 7168, v7")
    a("s_lshl_b32 s46, s44, 8")
    a(f"v_add3_u32 v{VB}, v7, v6, s46")
    a("s_lshl_b32 s24, s40, 11")
    a("s_lshl_b32 s25, s40, 10")
    a(f"s_add_u32 s25, s25, {BBASE}")
    a("s_mov_b32 s26, 0"); a("s_mov_b32 s27, 0"); a("s_mov_b32 s85, 0"); a("s_mov_b32 s86, 0")
    a("v_and_b32 v4, 15, v2")
    a("v_and_b32 v5, 7, v2")
    a("v_lshrrev_b32 v6, 4, v2")
    a("v_xor_b32 v5, v5, v6")
    a("v_lshlrev_b32 v5, 4, v5")
    a("v_lshlrev_b32 v4, 7, v4")
    a("s_lshl_b32 s46, s41, 14")
    a(f"v_add3_u32 v{VX0}, v4, v5, s46")
    a(f"v_xor_b32 v{VX1}, 64, v{VX0}")
    a("v_bfe_u32 v4, v2, 2, 3")
    a("v_lshrrev_b32 v5, 5, v2")
    a("v_lshlrev_b32 v5, 4, v5")
    a("v_or_b32 v5, v4, v5")
    a("v_lshlrev_b32 v5, 8, v5")
    a("s_lshl_b32 s46, s42, 1")
    a("v_xor_b32 v4, s46, v4")
    a("v_lshlrev_b32 v4, 5, v4")
    a("v_and_b32 v6, 3, v2")
    a("v_lshlrev_b32 v6, 3, v6")
    a("v_add3_u32 v4, v4, v5, v6")
    a(f"v_add_u32 v{VW0}, {BBASE}, v4")
    a(f"v_xor_b32 v{VW1}, 32, v{VW0}")

    def dmaA(half):
        g = [f"s_add_u32 s87, s24, s26",
             f"s_add_u32 m0, s87, {half*16384}",
             (f"s_add_u32 s88, s27, {128*2048}" if half else "s_mov_b32 s88, s27"),
             f"buffer_load_dwordx4 v{VA0}, s[8:11], s88 offen lds",
             f"buffer_load_dwordx4 v{VA1}, s[8:11], s88 offen offset:1024 lds"]
        if half:
            g += ["s_add_u32 s27, s27, 128",
                  f"s_add_u32 s26, s26, {ASL}",
                  f"s_cmp_eq_u32 s26, {NA*ASL}",
                  "s_cselect_b32 s26, 0, s26"]
        return g
    def dmaB():
        return [["s_add_u32 m0, s25, s86", "s_add_u32 s87, s25, s86",
                 f"buffer_load_dwordx4 v{VB}, s[12:15], s85 offen lds"],
                ["s_add_u32 m0, s87, 8192", f"s_add_u32 s86, s86, {BUN}",
                 f"buffer_load_dwordx4 v{VB}, s[16:19], s85 offen lds",
                 f"s_add_u32 s85, s85, {32*7168}",
                 f"s_and_b32 s86, s86, {NB*BUN-1}"]]
    def filt(g):
        return g if opt.get("dma", True) else [i for i in g if not i.startswith("buffer_load")]

    for i in filt(dmaA(0)): a(i)
    for s_ in range(4):
        for g in dmaB():
            for i in filt(g): a(i)
        for i in filt(dmaA((s_ + 1) & 1)): a(i)
        if s_ == 0:
            for i in range(128): a(f"v_mov_b32 v{ACC+i}, 0")
    st()

    def reads(stt):
        r = []
        if opt.get("xreads", True):
            r += [f"ds_read_b128 {vr(xf(stt,mt),4)}, v{VXS} offset:{mt*2048}" for mt in range(8)]
        w = []
        if opt.get("wreads", True):
            for nt in range(4):
                mat, t = divmod(nt, 2)
                v = VWS1 if t else VWS0
                w += [f"ds_read_b64_tr_b16 {vr(wf(stt,nt),2)}, v{v} offset:{mat*8192}",
                      f"ds_read_b64_tr_b16 {vr(wf(stt,nt)+2,2)}, v{v} offset:{mat*8192+2048}"]
        return w[:2] + r + w[2:]

    def read_addr(kh):
        return [f"v_add_u32 v{VXS}, s90, v{VX1 if kh else VX0}",
                f"v_add_u32 v{VWS0}, s91, v{VW0}",
                f"v_add_u32 v{VWS1}, s91, v{VW1}"]
    def read_adv(kh):
        r = [f"s_add_u32 s91, s91, {BUN}", f"s_and_b32 s91, s91, {NB*BUN-1}"]
        if kh:
            r += [f"s_add_u32 s90, s90, {ASL}", f"s_cmp_eq_u32 s90, {NA*ASL}", "s_cselect_b32 s90, 0, s90"]
        return r

    a("s_waitcnt vmcnt(12)")
    a("s_barrier")
    st()
    a("s_mov_b32 s90, 0"); a("s_mov_b32 s91, 0")
    for i in read_addr(0): a(i)
    for i in reads(0): a(i)
    for i in read_adv(0): a(i)

    def step(i, par, doA, doB, vm, do_reads):
        a("s_waitcnt lgkmcnt(0)" if vm is None else f"s_waitcnt vmcnt({vm}) lgkmcnt(0)")
        if do_reads or doA or doB:
            a("s_barrier")
        fill = []
        if do_reads:
            fill += [read_addr(par ^ 1)]
            fill += [[r] for r in reads(par ^ 1)]
            fill += [read_adv(par ^ 1)]
        dm = []
        if opt.get("dma_main", True):
            if doB: dm += [filt(g) for g in dmaB()]
            if doA: dm += [filt(dmaA(par ^ 1))]
        fill = fill + dm
        n = 0
        for nt in range(4):
            for mt in range(8):
                if opt.get("mfma", True):
                    a(f"v_mfma_f32_16x16x32_bf16 {vr(acc(mt,nt),4)}, {vr(wf(par,nt),4)}, {vr(xf(par,mt),4)}, {vr(acc(mt,nt),4)}")
                if n >= 1 and fill:
                    for ins in fill.pop(0): a(ins)
                n += 1
        assert not fill

    NMAIN = 26
    a("s_mov_b32 s89, 0")
    a.label("G1_loop")
    step(0, 0, True, True, 8, True)
    step(1, 1, True, True, 8, True)
    a("s_add_u32 s89, s89, 2")
    a(f"s_cmp_lt_u32 s89, {NMAIN}")
    a("s_cbranch_scc1 G1_loop")
    step(26, 0, True, True, 8, True)
    step(27, 1, False, True, 8, True)
    step(28, 0, False, False, 6, True)
    step(29, 1, False, False, 2, True)
    step(30, 0, False, False, 0, True)
    step(31, 1, False, False, None, False)

    st()
    C0 = -2.0 * 0.7978845608028654 * 1.4426950408889634
    C1 = C0 * 0.044715
    KC0, KC1, KONE = 4, 6, 8
    a(f"v_mov_b32 v{KC0}, {f2u(C0):#x}"); a(f"v_mov_b32 v{KC0+1}, {f2u(C0):#x}")
    a(f"v_mov_b32 v{KC1}, {f2u(C1):#x}"); a(f"v_mov_b32 v{KC1+1}, {f2u(C1):#x}")
    a(f"v_mov_b32 v{KONE}, 1.0"); a(f"v_mov_b32 v{KONE+1}, 1.0")
    a("v_and_b32 v10, 15, v2")
    a("s_lshl_b32 s46, s41, 7")
    a("s_add_u32 s46, s46, s45")
    a("v_add_u32 v10, s46, v10")
    a("v_mul_u32_u24 v10, 7168, v10")
    a("s_lshl_b32 s46, s44, 8")
    a("s_lshl_b32 s47, s42, 6")
    a("s_add_u32 s46, s46, s47")
    a("v_lshrrev_b32 v11, 4, v2")
    a("v_and_b32 v12, 1, v11"); a("v_lshlrev_b32 v12, 5, v12")
    a("v_lshrrev_b32 v13, 1, v11"); a("v_lshlrev_b32 v13, 4, v13")
    a("v_add3_u32 v10, v10, v12, v13")
    a("v_add_u32 v10, s46, v10")
    T = XF
    p2 = lambda r: vr(r, 2)
    for mt in range(8):
        P = WF + (mt & 1) * 4
        t = T + (mt & 1) * 16
        for n2 in range(2):
            g0 = acc(mt, n2); u0 = acc(mt, 2 + n2); tt = t + n2 * 8
            for h in range(2):
                a(f"v_pk_mul_f32 {p2(tt+2*h)}, {p2(g0+2*h)}, {p2(g0+2*h)}")
            for h in range(2):
                a(f"v_pk_fma_f32 {p2(tt+2*h)}, {p2(tt+2*h)}, {p2(KC1)}, {p2(KC0)}")
            for h in range(2):
                a(f"v_pk_mul_f32 {p2(tt+2*h)}, {p2(tt+2*h)}, {p2(g0+2*h)}")
            for r in range(4):
                a(f"v_exp_f32 v{tt+r}, v{tt+r}")
            for h in range(2):
                a(f"v_pk_mul_f32 {p2(tt+4+2*h)}, {p2(g0+2*h)}, {p2(u0+2*h)}")
            for h in range(2):
                a(f"v_pk_add_f32 {p2(tt+2*h)}, {p2(tt+2*h)}, {p2(KONE)}")
            for r in range(4):
                a(f"v_rcp_f32 v{tt+r}, v{tt+r}")
            a("s_nop 0")
            for h in range(2):
                a(f"v_pk_mul_f32 {p2(tt+2*h)}, {p2(tt+2*h)}, {p2(tt+4+2*h)}")
            a(f"v_cvt_pk_bf16_f32 v{P+2*n2}, v{tt}, v{tt+1}")
            a(f"v_cvt_pk_bf16_f32 v{P+2*n2+1}, v{tt+2}, v{tt+3}")
        a(f"s_mov_b32 s84, {mt*16*7168}")
        a("s_nop 0")
        a(f"v_permlane16_swap_b32 v{P}, v{P+2}")
        a(f"v_permlane16_swap_b32 v{P+1}, v{P+3}")
        a(f"buffer_store_dwordx4 {vr(P,4)}, v10, s[20:23], s84 offen")
    st()
    if opt.get("stamps"):
        a("s_waitcnt vmcnt(0)")
        st()
        st.flush(38, "s40", 0)
    a("s_endpgm")

    a.label("G1_prep")
    a("s_waitcnt lgkmcnt(0)")
    if not opt.get("prep", True):
        a("s_endpgm")
    srd(a, 8, 4, S * D * 2)
    srd(a, 48, 6, S * D * 2)
    srd(a, 52, 28, S * D * 2)
    srd(a, 56, 30, D * 4 * 2)
    srd(a, 60, 38, D * 2 * S * 2, WS_V)
    srd(a, 64, 36, D * 2)
    srd(a, 68, 38, S * 4, WS_G)
    a("s_sub_u32 s41, s2, 224")
    PK = 16
    PV = 84
    PS = 152
    a("v_lshlrev_b32 v3, 2, v0")
    a("v_lshlrev_b32 v4, 4, v0")
    a(f"buffer_load_dwordx4 {vr(PS,4)}, v4, s[56:59], 0 offen")
    a("s_lshl_b32 s46, s41, 6")
    a("s_sub_u32 s46, s46, 4")
    a("s_lshl_b32 s46, s46, 11")
    for r in range(68):
        a(f"s_add_u32 s47, s46, {r*2048}")
        a(f"buffer_load_dword v{PK+r}, v3, s[48:51], s47 offen")
        if r >= 3:
            a(f"buffer_load_dword v{PV+r-3}, v3, s[52:55], s47 offen")
        if r == 28: a("s_waitcnt vmcnt(30)")
        if r == 48: a("s_waitcnt vmcnt(30)")
    W = 156; KF = 164; U = 176; O = 188; TMP = 196
    a("s_mul_i32 s42, s40, 17408")
    a("v_mul_u32_u24 v5, 272, v2")
    a("v_add_u32 v5, s42, v5")
    a("v_lshrrev_b32 v6, 4, v2")
    a("v_mul_u32_u24 v6, 272, v6")
    a("v_and_b32 v7, 15, v2")
    a("v_lshlrev_b32 v7, 4, v7")
    a("v_add3_u32 v6, v6, v7, s42")
    a("v_lshrrev_b32 v7, 4, v2")
    a("v_lshlrev_b32 v7, 14, v7")
    a("v_bfe_u32 v8, v2, 3, 1")
    a("v_lshlrev_b32 v8, 12, v8")
    a("v_and_b32 v9, 7, v2")
    a("v_lshlrev_b32 v9, 4, v9")
    a("v_add3_u32 v7, v7, v8, v9")
    a("s_lshl_b32 s43, s40, 20")
    a("s_lshl_b32 s44, s41, 7")
    a("s_sub_u32 s44, 3968, s44")
    a("s_add_u32 s43, s43, s44")
    a("v_add_u32 v7, s43, v7")
    a("s_waitcnt vmcnt(0)")
    for ch in range(2):
        a(f"v_lshlrev_b32 v{W+0}, 16, v{PS+ch*2}")
        a(f"v_and_b32 v{W+1}, 0xffff0000, v{PS+ch*2}")
        a(f"v_lshlrev_b32 v{W+2}, 16, v{PS+ch*2+1}")
        a(f"v_and_b32 v{W+3}, 0xffff0000, v{PS+ch*2+1}")
        unp = (lambda d, s_: f"v_lshlrev_b32 v{d}, 16, v{s_}") if ch == 0 else (lambda d, s_: f"v_and_b32 v{d}, 0xffff0000, v{s_}")
        for j in range(8):
            for r in range(12): a(unp(KF + r, PK + 8 * j + r))
            for t in range(9):
                a(f"v_mul_f32 v{U+t}, v{KF+t}, v{W+3}")
                a(f"v_fmac_f32 v{U+t}, v{KF+t+1}, v{W+2}")
                a(f"v_fmac_f32 v{U+t}, v{KF+t+2}, v{W+1}")
                a(f"v_fmac_f32 v{U+t}, v{KF+t+3}, v{W+0}")
            for t in range(0, 9, 2):
                t2 = min(t + 1, 8)
                a(f"v_cvt_pk_bf16_f32 v{TMP}, v{U+t}, v{U+t2}")
                a(f"v_lshlrev_b32 v{U+t}, 16, v{TMP}")
                if t2 != t: a(f"v_and_b32 v{U+t2}, 0xffff0000, v{TMP}")
            for t in range(9):
                a(unp(TMP + 1, PV + 8 * j + t))
                a(f"v_mul_f32 v{U+t}, v{U+t}, v{TMP+1}")
            for i in range(4):
                a(f"v_cvt_pk_bf16_f32 v{O+i}, v{U+7-2*i}, v{U+6-2*i}")
                a(f"v_cvt_pk_bf16_f32 v{O+4+i}, v{U+8-2*i}, v{U+7-2*i}")
            a(f"ds_write_b128 v5, {vr(O,4)} offset:{16*(7-j)}")
            a(f"ds_write_b128 v5, {vr(O+4,4)} offset:{128+16*(7-j)}")
        a("s_waitcnt lgkmcnt(0)")
        R = 200
        for i in range(16):
            a(f"ds_read_b128 {vr(R+(i%8)*4,4)}, v6 offset:{i*4*272}")
            if i % 8 == 7:
                for q in range(8):
                    ii = i - 7 + q
                    a(f"s_waitcnt lgkmcnt({7-q})")
                    a(f"s_mov_b32 s47, {ii*4*16384 + ch*8192}")
                    a(f"buffer_store_dwordx4 {vr(R+q*4,4)}, v7, s[60:63], s47 offen")
                a("s_nop 1")
    PX = 16; PG = 152
    a("v_lshlrev_b32 v4, 5, v2")
    a(f"buffer_load_dwordx4 {vr(PG,4)}, v4, s[64:67], 0 offen")
    a(f"buffer_load_dwordx4 {vr(PG+4,4)}, v4, s[64:67], 0 offen offset:16")
    a("s_lshl_b32 s46, s41, 6")
    a("s_lshl_b32 s47, s40, 3")
    a("s_add_u32 s46, s46, s47")
    a("s_lshl_b32 s44, s46, 11")
    for i in range(8):
        a(f"s_add_u32 s47, s44, {i*2048}")
        a(f"buffer_load_dwordx4 {vr(PX+8*i,4)}, v4, s[8:11], s47 offen")
        a(f"buffer_load_dwordx4 {vr(PX+8*i+4,4)}, v4, s[8:11], s47 offen offset:16")
    a("s_waitcnt vmcnt(0)")
    GW = 160
    for i in range(8):
        a(f"v_lshlrev_b32 v{GW+2*i}, 16, v{PG+i}")
        a(f"v_and_b32 v{GW+2*i+1}, 0xffff0000, v{PG+i}")
    ACG = 100
    for r in range(8):
        a(f"v_mov_b32 v{ACG+r}, 0")
        for i in range(8):
            a(f"v_lshlrev_b32 v5, 16, v{PX+8*r+i}")
            a(f"v_and_b32 v6, 0xffff0000, v{PX+8*r+i}")
            a(f"v_fmac_f32 v{ACG+r}, v5, v{GW+2*i}")
            a(f"v_fmac_f32 v{ACG+r}, v6, v{GW+2*i+1}")
    for off in (0x041F, 0x081F, 0x101F, 0x201F, 0x401F):
        for r in range(8): a(f"ds_swizzle_b32 v{ACG+8+r}, v{ACG+r} offset:{off}")
        a("s_waitcnt lgkmcnt(0)")
        for r in range(8): a(f"v_add_f32 v{ACG+r}, v{ACG+r}, v{ACG+8+r}")
    a("v_mov_b32 v4, 0")
    for r in range(8):
        a(f"v_readlane_b32 s47, v{ACG+r}, 0")
        a(f"v_readlane_b32 s44, v{ACG+r}, 32")
        a("s_nop 1")
        a(f"v_mov_b32 v5, s47")
        a(f"v_add_f32 v5, s44, v5")
        a(f"v_cmp_eq_u32 vcc, {r}, v2")
        a("s_nop 1")
        a("v_cndmask_b32 v4, v4, v5, vcc")
    a("v_cvt_pk_bf16_f32 v4, v4, v4")
    a("v_lshlrev_b32 v4, 16, v4")
    a(f"v_mul_f32 v4, {f2u(-1.4426950408889634):#x}, v4")
    a("v_exp_f32 v4, v4")
    a("s_nop 0")
    a("v_add_f32 v4, 1.0, v4")
    a("v_rcp_f32 v4, v4")
    a("s_nop 0")
    a("v_cvt_pk_bf16_f32 v4, v4, v4")
    a("v_lshlrev_b32 v4, 16, v4")
    a("s_lshl_b32 s46, s46, 2")
    a("v_lshlrev_b32 v5, 2, v2")
    a("v_cmp_gt_u32 vcc, 8, v2")
    a("s_and_saveexec_b64 s[88:89], vcc")
    a("buffer_store_dword v4, v5, s[68:71], s46 offen")
    a.label("G1_end")
    a("s_endpgm")
    return kernel_desc(name, 256)
```

```python
from gen import *

def gen_gemm2(a, opt):
    name = "gemm2_kernel"
    NS = 6; STG = 24576; BOFF = 16384; ZOFF = NS * STG
    KST = 56
    ACC = 16
    XF = 48
    WF = 112
    Q = 144
    G = 160
    VA = 164
    VB = 168
    VX0, VX1, VW0, VW1 = 170, 171, 172, 173
    VXS0, VXS1, VWS0, VWS1 = 174, 175, 176, 177
    VO = 178
    acc = lambda mt, nt: ACC + (mt * 2 + nt) * 4
    xf = lambda st, kh, mt: XF + st * 32 + (kh * 4 + mt) * 4
    wf = lambda st, kh, nt: WF + st * 16 + (kh * 2 + nt) * 4
    kernel_head(a, name)
    a("s_cmp_ge_u32 s2, 256")
    a("s_cbranch_scc1 G2_end")
    a("s_load_dwordx2 s[4:5], s[0:1], 0")
    a("s_load_dwordx2 s[6:7], s[0:1], 72")
    a("s_load_dwordx2 s[36:37], s[0:1], 88")
    a("s_load_dwordx2 s[38:39], s[0:1], 104")
    a("v_lshrrev_b32 v1, 6, v0")
    a("v_and_b32 v2, 63, v0")
    a("s_nop 0")
    a("v_readfirstlane_b32 s40, v1")
    a("s_and_b32 s41, s2, 7")
    a("s_lshr_b32 s42, s2, 3")
    a("s_and_b32 s43, s41, 3"); a("s_lshl_b32 s43, s43, 2")
    a("s_and_b32 s44, s42, 3"); a("s_add_u32 s43, s43, s44")
    a("s_lshr_b32 s44, s41, 2"); a("s_lshl_b32 s44, s44, 3")
    a("s_lshr_b32 s45, s42, 2"); a("s_add_u32 s44, s44, s45")
    a("s_lshr_b32 s41, s40, 1")
    a("s_and_b32 s42, s40, 1")
    a("s_lshl_b32 s45, s43, 7")
    a("s_lshl_b32 s46, s44, 6")
    a("s_waitcnt lgkmcnt(0)")
    st = Stamps(a, opt.get("stamps", False))
    st()
    srd(a, 8, 38, S * F * 2, WS_H)
    srd(a, 12, 6, F * D * 2)
    srd(a, 16, 4, S * D * 2)
    srd(a, 20, 36, S * D * 2)
    srd(a, 24, 38, D * S * 2, WS_Z)
    srd(a, 28, 38, S * 4, WS_G)
    a("v_lshrrev_b32 v4, 3, v2")
    a("v_and_b32 v5, 7, v2")
    a("v_xor_b32 v5, v5, v4")
    a("v_lshlrev_b32 v5, 4, v5")
    a("s_lshl_b32 s47, s40, 5")
    a("s_add_u32 s47, s47, s45")
    a("v_add_u32 v4, s47, v4")
    a("v_mul_u32_u24 v4, 7168, v4")
    a(f"v_add_u32 v{VA}, v4, v5")
    for b in range(1, 4):
        a(f"v_add_u32 v{VA+b}, {b*(8*7168-1024)}, v{VA}")
    a("v_lshrrev_b32 v4, 3, v2")
    a("v_bfe_u32 v5, v2, 4, 2")
    a("v_lshlrev_b32 v5, 1, v5")
    a("v_and_b32 v6, 7, v2")
    a("v_xor_b32 v5, v5, v6")
    a("v_lshlrev_b32 v5, 4, v5")
    a("s_lshl_b32 s47, s40, 4")
    for b in range(2):
        a(f"v_add_u32 v6, s47, v4")
        if b: a("v_add_u32 v6, 8, v6")
        a("v_and_b32 v7, 51, v6")
        a("v_lshrrev_b32 v8, 1, v6"); a("v_and_b32 v8, 4, v8")
        a("v_lshlrev_b32 v9, 1, v6"); a("v_and_b32 v9, 8, v9")
        a("v_or3_b32 v7, v7, v8, v9")
        a("v_lshlrev_b32 v7, 11, v7")
        a("s_lshl_b32 s48, s46, 1")
        a(f"v_add3_u32 v{VB+b}, v7, v5, s48")
        if b: a(f"v_subrev_u32 v{VB+b}, 1024, v{VB+b}")
    a("s_lshl_b32 s50, s40, 12")
    a("s_lshl_b32 s51, s40, 11")
    a(f"s_add_u32 s51, s51, {BOFF}")
    a("s_mov_b32 s52, 0")
    a("s_mov_b32 s53, 0")
    a("s_mov_b32 s54, 0")
    a("v_lshrrev_b32 v4, 4, v2")
    a("s_lshl_b32 s47, s40, 4"); a("s_add_u32 s47, s47, s46")
    a("v_add_u32 v4, s47, v4")
    a("v_lshlrev_b32 v4, 12, v4")
    a("v_and_b32 v5, 15, v2"); a("v_lshlrev_b32 v5, 4, v5")
    a("s_lshl_b32 s48, s45, 1")
    a("v_add3_u32 v4, v4, v5, s48")
    a(f"s_add_u32 m0, s50, {ZOFF}")
    for i in range(4):
        a(f"v_add_u32 v5, {i*(4*4096-1024)}, v4")
        a(f"buffer_load_dwordx4 v5, s[24:27], 0 offen offset:{i*1024} lds")
    a("v_and_b32 v4, 15, v2")
    a("s_lshl_b32 s47, s41, 6"); a("s_add_u32 s47, s47, s45")
    a("v_add_u32 v4, s47, v4")
    a("v_lshlrev_b32 v6, 2, v4")
    for mt in range(4):
        a(f"buffer_load_dword v{G+mt}, v6, s[28:31], 0 offen offset:{mt*64}")
    a("v_lshlrev_b32 v4, 11, v4")
    a("s_lshl_b32 s47, s42, 5"); a("s_add_u32 s47, s47, s46"); a("s_lshl_b32 s47, s47, 1")
    a("v_add_u32 v4, s47, v4")
    a("v_lshrrev_b32 v5, 4, v2")
    a("v_lshlrev_b32 v6, 3, v5")
    a("v_add_u32 v6, v4, v6")
    for mt in range(4):
        a(f"s_mov_b32 s47, {mt*16*2048}")
        for nt in range(2):
            a(f"buffer_load_dwordx2 {vr(Q+(mt*2+nt)*2,2)}, v6, s[16:19], s47 offen offset:{nt*32}")
    a("v_and_b32 v6, 1, v5"); a("v_lshlrev_b32 v6, 5, v6")
    a("v_lshrrev_b32 v7, 1, v5"); a("v_lshlrev_b32 v7, 4, v7")
    a(f"v_add3_u32 v{VO}, v4, v6, v7")
    a("v_and_b32 v4, 15, v2")
    a("v_and_b32 v5, 7, v2")
    a("v_lshrrev_b32 v6, 4, v2")
    a("v_xor_b32 v5, v5, v6")
    a("v_lshlrev_b32 v5, 4, v5")
    a("v_lshlrev_b32 v4, 7, v4")
    a("s_lshl_b32 s47, s41, 13")
    a(f"v_add3_u32 v{VX0}, v4, v5, s47")
    a(f"v_xor_b32 v{VX1}, 64, v{VX0}")
    a("v_bfe_u32 v4, v2, 2, 3")
    a("v_lshrrev_b32 v5, 5, v2"); a("v_lshlrev_b32 v5, 4, v5")
    a("v_or_b32 v5, v4, v5")
    a("v_lshlrev_b32 v5, 7, v5")
    a("v_lshrrev_b32 v4, 1, v4")
    a("s_lshl_b32 s47, s42, 1")
    a("v_xor_b32 v4, s47, v4")
    a("v_lshlrev_b32 v4, 5, v4")
    a("v_and_b32 v6, 3, v2"); a("v_lshlrev_b32 v6, 3, v6")
    a("v_add3_u32 v4, v4, v5, v6")
    a(f"v_add_u32 v{VW0}, {BOFF}, v4")
    a(f"v_xor_b32 v{VW1}, 32, v{VW0}")

    def dma():
        g = [["s_add_u32 m0, s50, s52", "s_nop 0"] +
             [f"buffer_load_dwordx4 v{VA+b}, s[8:11], s53 offen offset:{b*1024} lds" for b in range(2)],
             [f"buffer_load_dwordx4 v{VA+b}, s[8:11], s53 offen offset:{b*1024} lds" for b in range(2, 4)],
             ["s_add_u32 m0, s51, s52", "s_add_u32 s53, s53, 128"] +
             [f"buffer_load_dwordx4 v{VB+b}, s[12:15], s54 offen offset:{b*1024} lds" for b in range(2)],
             [f"s_add_u32 s54, s54, {64*2048}", f"s_add_u32 s52, s52, {STG}",
              f"s_cmp_eq_u32 s52, {NS*STG}", "s_cselect_b32 s52, 0, s52"]]
        return g
    for s_ in range(NS - 1):
        for g in dma():
            for i in g: a(i)
    for i in range(32): a(f"v_mov_b32 v{ACC+i}, 0")
    st()
    def reads(stt):
        r = []
        for kh in range(2):
            for nt in range(2):
                v = VWS1 if nt else VWS0
                r += [f"ds_read_b64_tr_b16 {vr(wf(stt,kh,nt),2)}, v{v} offset:{kh*4096}",
                      f"ds_read_b64_tr_b16 {vr(wf(stt,kh,nt)+2,2)}, v{v} offset:{kh*4096+1024}"]
            for mt in range(4):
                r += [f"ds_read_b128 {vr(xf(stt,kh,mt),4)}, v{VXS1 if kh else VXS0} offset:{mt*2048}"]
        return r
    def raddr():
        return [f"v_add_u32 v{VXS0}, s55, v{VX0}", f"v_add_u32 v{VXS1}, s55, v{VX1}",
                f"v_add_u32 v{VWS0}, s55, v{VW0}", f"v_add_u32 v{VWS1}, s55, v{VW1}",
                f"s_add_u32 s55, s55, {STG}", f"s_cmp_eq_u32 s55, {NS*STG}", "s_cselect_b32 s55, 0, s55"]
    a(f"s_waitcnt vmcnt({6*(NS-2)})")
    a("s_barrier")
    st()
    a("s_mov_b32 s55, 0")
    for i in raddr(): a(i)
    for i in reads(0): a(i)
    def step(par, do_dma, vm, do_reads):
        a("s_waitcnt lgkmcnt(0)" if vm is None else f"s_waitcnt vmcnt({vm}) lgkmcnt(0)")
        if do_reads: a("s_barrier")
        fill = []
        if do_dma: fill += dma()
        if do_reads:
            fill = [raddr()] + fill
            rr = reads(par ^ 1)
            fill += [rr[i:i+2] for i in range(0, len(rr), 2)]
        n = 0
        for kh in range(2):
            for nt in range(2):
                for mt in range(4):
                    a(f"v_mfma_f32_16x16x32_bf16 {vr(acc(mt,nt),4)}, {vr(wf(par,kh,nt),4)}, {vr(xf(par,kh,mt),4)}, {vr(acc(mt,nt),4)}")
                    if fill:
                        for ins in fill.pop(0): a(ins)
        assert not fill
    nmain = KST - NS + 1
    VM = 6 * (NS - 3)
    npeel = nmain % 2
    par = 0
    a("s_mov_b32 s56, 0")
    a.label("G2_loop")
    step(0, True, VM, True)
    step(1, True, VM, True)
    a("s_add_u32 s56, s56, 2")
    a(f"s_cmp_lt_u32 s56, {nmain - npeel}")
    a("s_cbranch_scc1 G2_loop")
    i = nmain - npeel
    if npeel:
        step(i & 1, True, VM, True); i += 1
    while i < KST:
        rem = KST - 1 - (i + 1)
        if i == KST - 1: step(i & 1, False, None, False)
        else: step(i & 1, False, 6 * min(rem, NS - 3), True)
        i += 1
    st()
    a("v_lshrrev_b32 v4, 2, v2")
    a("v_lshlrev_b32 v4, 8, v4")
    a("v_and_b32 v5, 3, v2"); a("v_lshlrev_b32 v5, 3, v5")
    a("s_lshl_b32 s47, s42, 13")
    a("s_lshl_b32 s48, s41, 7")
    a("s_add_u32 s47, s47, s48")
    a(f"s_add_u32 s47, s47, {ZOFF}")
    a("v_add3_u32 v4, v4, v5, s47")
    Z = XF
    for mt in range(4):
        for nt in range(2):
            a(f"ds_read_b64_tr_b16 {vr(Z+(mt*2+nt)*2,2)}, v4 offset:{nt*4096+mt*32}")
    OM = 8
    for mt in range(4):
        a(f"v_sub_f32 v{OM+mt}, 1.0, v{G+mt}")
        a(f"v_cvt_pk_bf16_f32 v{OM+mt}, v{OM+mt}, v{OM+mt}")
        a(f"v_lshlrev_b32 v{OM+mt}, 16, v{OM+mt}")
    a("s_waitcnt lgkmcnt(0)")
    T = XF + 16
    def rnd4(t):
        a(f"v_cvt_pk_bf16_f32 v{t+8}, v{t}, v{t+1}")
        a(f"v_cvt_pk_bf16_f32 v{t+9}, v{t+2}, v{t+3}")
        a(f"v_lshlrev_b32 v{t}, 16, v{t+8}"); a(f"v_and_b32 v{t+1}, 0xffff0000, v{t+8}")
        a(f"v_lshlrev_b32 v{t+2}, 16, v{t+9}"); a(f"v_and_b32 v{t+3}, 0xffff0000, v{t+9}")
    for mt in range(4):
        P = WF + (mt & 1) * 4
        for nt in range(2):
            z = Z + (mt * 2 + nt) * 2; q = Q + (mt * 2 + nt) * 2; c = acc(mt, nt)
            t = T
            for h in range(2):
                a(f"v_lshlrev_b32 v{t+2*h}, 16, v{z+h}"); a(f"v_and_b32 v{t+2*h+1}, 0xffff0000, v{z+h}")
                a(f"v_lshlrev_b32 v{t+4+2*h}, 16, v{q+h}"); a(f"v_and_b32 v{t+5+2*h}, 0xffff0000, v{q+h}")
            for r in range(4): a(f"v_mul_f32 v{t+r}, v{t+r}, v{t+4+r}")
            rnd4(t)
            for r in range(4): a(f"v_mul_f32 v{t+r}, v{t+r}, v{G+mt}")
            rnd4(t)
            t2 = T + 12
            a(f"v_cvt_pk_bf16_f32 v{t2+8}, v{c}, v{c+1}")
            a(f"v_cvt_pk_bf16_f32 v{t2+9}, v{c+2}, v{c+3}")
            a(f"v_lshlrev_b32 v{t2}, 16, v{t2+8}"); a(f"v_and_b32 v{t2+1}, 0xffff0000, v{t2+8}")
            a(f"v_lshlrev_b32 v{t2+2}, 16, v{t2+9}"); a(f"v_and_b32 v{t2+3}, 0xffff0000, v{t2+9}")
            for r in range(4): a(f"v_mul_f32 v{t2+r}, v{t2+r}, v{OM+mt}")
            rnd4(t2)
            for r in range(4): a(f"v_add_f32 v{t+r}, v{t+r}, v{t2+r}")
            a(f"v_cvt_pk_bf16_f32 v{P+2*nt}, v{t}, v{t+1}")
            a(f"v_cvt_pk_bf16_f32 v{P+2*nt+1}, v{t+2}, v{t+3}")
        a(f"s_mov_b32 s47, {mt*16*2048}")
        a("s_nop 0")
        a(f"v_permlane16_swap_b32 v{P}, v{P+2}")
        a(f"v_permlane16_swap_b32 v{P+1}, v{P+3}")
        a(f"buffer_store_dwordx4 {vr(P,4)}, v{VO}, s[20:23], s47 offen")
    st()
    if opt.get("stamps"):
        a("s_waitcnt vmcnt(0)")
        st()
        st.flush(38, "s40", 2)
    a.label("G2_end")
    a("s_endpgm")
    return kernel_desc(name, 180)
```

```python
import sys, struct

S, D, F = 2048, 1024, 3584
WS_H   = 0
WS_V   = 16 << 20
WS_Z   = 32 << 20
WS_G   = 40 << 20
WS_SIZE = 268435456

def f2u(x): return struct.unpack("<I", struct.pack("<f", x))[0]

class Asm:
    def __init__(self): self.l = []
    def __call__(self, s): self.l.append("    " + s)
    def label(self, s): self.l.append(s + ":")
    def raw(self, s): self.l.append(s)
    def c(self, s): self.l.append("    ; " + s)
    def text(self): return "\n".join(self.l) + "\n"

def vr(b, n=1): return f"v{b}" if n == 1 else f"v[{b}:{b+n-1}]"
def sr(b, n=1): return f"s{b}" if n == 1 else f"s[{b}:{b+n-1}]"

def kernel_head(a, name):
    a.raw(f".globl {name}"); a.raw(".p2align 8"); a.raw(f".type {name},@function"); a.label(name)

def kernel_desc(name, vgpr, sgpr=102):
    acc = (vgpr + 3) // 4 * 4
    return f""".p2align 6
.amdhsa_kernel {name}
  .amdhsa_next_free_vgpr {vgpr}
  .amdhsa_next_free_sgpr {sgpr}
  .amdhsa_accum_offset {acc}
  .amdhsa_group_segment_fixed_size 0
  .amdhsa_kernarg_size 112
  .amdhsa_user_sgpr_count 2
  .amdhsa_user_sgpr_kernarg_segment_ptr 1
  .amdhsa_system_sgpr_workgroup_id_x 1
.end_amdhsa_kernel
"""

def srd(a, d, b, nbytes, off=0):
    if off:
        a(f"s_add_u32 s{d}, s{b}, {off}")
        a(f"s_addc_u32 s{d+1}, s{b+1}, 0")
    else:
        a(f"s_mov_b32 s{d}, s{b}")
        a(f"s_mov_b32 s{d+1}, s{b+1}")
    a(f"s_mov_b32 s{d+2}, {nbytes}")
    a(f"s_mov_b32 s{d+3}, 0x00020000")

WS_T = 48 << 20
class Stamps:
    def __init__(self, a, on): self.a, self.on, self.n = a, on, 0
    def __call__(self):
        if not self.on: return
        a = self.a
        a("s_memtime s[100:101]")
        a("s_waitcnt lgkmcnt(0)")
        a(f"s_mov_b32 s{92+self.n}, s100")
        self.n += 1
    def flush(self, wsreg, wavereg, slot):
        if not self.on: return
        a = self.a
        srd(a, 72, wsreg, 1 << 20, WS_T + slot * (1 << 18))
        a(f"s_lshl_b32 s76, s2, 9")
        a(f"s_lshl_b32 s77, {wavereg}, 6")
        a("s_add_u32 s76, s76, s77")
        for i in range(self.n):
            a(f"v_mov_b32 v4, s{92+i}")
            a(f"v_mov_b32 v5, {4*i}")
            a("buffer_store_dword v4, v5, s[72:75], s76 offen")
            a("s_nop 1")

def build(opt):
    a = Asm()
    hdr = open("gated_mix__ssm_conv_h3__geglu_ffn__prompt.s.ref").read().split("\n")
    for l in hdr:
        if l.startswith(";") and "@launch" not in l and "Override launch" not in l and "grid=ceil" not in l: a.raw(l)
    launches = opt.get("launches", ["gemm1", "conv", "gemm2"])
    L = {"gemm1": "; @launch kernel=gemm1_kernel grid=(256,1,1) block=(512,1,1) lds=163840",
         "conv": "; @launch kernel=conv_kernel grid=(256,1,1) block=(256,1,1) lds=103424",
         "gemm2": "; @launch kernel=gemm2_kernel grid=(256,1,1) block=(256,1,1) lds=163840"}
    for k in launches: a.raw(L[k])
    a.raw('.amdgcn_target "amdgcn-amd-amdhsa--gfx950"')
    a.raw(".text")
    descs = []
    if "gemm1" in launches:
        from gen_gemm1 import gen_gemm1
        descs.append(gen_gemm1(a, opt))
    if "conv" in launches:
        from gen_conv import gen_conv
        descs.append(gen_conv(a, opt))
    if "gemm2" in launches:
        from gen_gemm2 import gen_gemm2
        descs.append(gen_gemm2(a, opt))
    a.raw('.section .rodata,"a"')
    for d in descs: a.raw(d)
    return a.text()

if __name__ == "__main__":
    import json
    opt = json.loads(sys.argv[2]) if len(sys.argv) > 2 else {}
    open(sys.argv[1], "w").write(build(opt))
```
